```python
import torch

def _softmax(x, axis=-1):
    return torch.softmax(x, dim=axis)
def _gelu(x):
    return torch.nn.functional.gelu(x, approximate="tanh")
def _silu(x):
    return torch.nn.functional.silu(x)
def _sigmoid(x):
    return torch.sigmoid(x)
def _layernorm(x, axis=-1, eps=1e-5):
    m = x.mean(dim=axis, keepdim=True)
    v = x.var(dim=axis, keepdim=True, unbiased=False)
    return (x - m) / torch.sqrt(v + eps)
def _scatter_add(tgt, idx, src, axis=0):
    return tgt.clone().index_add_(axis, idx, src)
def _segment_sum(src, seg, n):
    out = torch.zeros((n,) + src.shape[1:], dtype=src.dtype)
    return out.index_add_(0, seg, src)
def _pad(x, pw):
    flat = tuple(v for pair in reversed(pw) for v in pair)
    return torch.nn.functional.pad(x, flat)

kernel_name = 'concat_heads__ssm_conv_h3__spectral_fnet__prompt'

def setup_inputs():

    _w = (lambda a: (lambda t: t.to(torch.bfloat16) if t.is_floating_point() else t)(torch.as_tensor(a)))
    def _A_setup():
        B, S, D = 1, 2048, 640
        ks = 4
        return {
            "q": _w((lambda *s: torch.randn(*s, dtype=torch.bfloat16) * 0.05)(B, S, D)),
            "k": _w((lambda *s: torch.randn(*s, dtype=torch.bfloat16) * 3.2)(B, S, D)),
            "v": _w((lambda *s: torch.randn(*s, dtype=torch.bfloat16) * 3.2)(B, S, D)),
            "shift_k": _w((lambda *s: torch.randn(*s, dtype=torch.bfloat16) * 3.2)(D, ks) * 0.5),
            "ssm_k": _w((lambda *s: torch.randn(*s, dtype=torch.bfloat16) * 3.2)(D, S) * (1.0 / S ** 0.5)),
            "ssm_D": _w((lambda *s: torch.randn(*s, dtype=torch.bfloat16) * 3.2)(D)),
        }
    _A_in = _A_setup()

    def _B_setup():
        B, S, D = 1, 2048, 640
        ns = torch.arange(S)[:, None] * torch.arange(S)[None, :]
        nd = torch.arange(D)[:, None] * torch.arange(D)[None, :]
        Ws_re = torch.cos(-2.0 * torch.pi * ns / S).to(float)
        Ws_im = torch.sin(-2.0 * torch.pi * ns / S).to(float)
        Wd_re = torch.cos(-2.0 * torch.pi * nd / D).to(float)
        Wd_im = torch.sin(-2.0 * torch.pi * nd / D).to(float)
        return {
            "x": _w((lambda *s: torch.randn(*s, dtype=torch.bfloat16) * 0.05)(B, S, D)),
            "dft_seq_re": _w(Ws_re),
            "dft_seq_im": _w(Ws_im),
            "dft_hid_re": _w(Wd_re),
            "dft_hid_im": _w(Wd_im),
        }
    _B_in = _B_setup()

    return {
        "A_q": _A_in["q"],
        "A_k": _A_in["k"],
        "A_v": _A_in["v"],
        "A_shift_k": _A_in["shift_k"],
        "A_ssm_k": _A_in["ssm_k"],
        "A_ssm_D": _A_in["ssm_D"],
        "B_x": _B_in["x"],
        "B_dft_seq_re": _B_in["dft_seq_re"],
        "B_dft_seq_im": _B_in["dft_seq_im"],
        "B_dft_hid_re": _B_in["dft_hid_re"],
        "B_dft_hid_im": _B_in["dft_hid_im"],
    }

def reference(A_q, A_k, A_v, A_shift_k, A_ssm_k, A_ssm_D, B_x, B_dft_seq_re, B_dft_seq_im, B_dft_hid_re, B_dft_hid_im):
    def _A_ref(q, k, v, shift_k, ssm_k, ssm_D):
        B, S, D = q.shape
        ks = shift_k.shape[-1]
        k_pad = _pad(k, ((0, 0), (ks - 1, 0), (0, 0)))
        k_shift = torch.zeros_like(k)
        for t in range(ks):
            k_shift = k_shift + k_pad[:, t:t + S, :] * shift_k[:, ks - 1 - t][None, None, :]
        kv = k_shift * v
        L = 2 * S
        kv_pad = _pad(kv, ((0, 0), (0, S), (0, 0)))
        kf_pad = _pad(ssm_k, ((0, 0), (0, S)))
        kv_f = (lambda x, axes=(-2,-1): torch.fft.rfft2(x.float(), dim=axes))(kv_pad[:, None, :, :], axes=(1, 2))
        kf_f = (lambda x, axes=(-2,-1): torch.fft.rfft2(x.float(), dim=axes))(kf_pad[:, None, :], axes=(1, 2))
        kf_f = (lambda x, *d: x.permute(*d))(kf_f, 1, 2, 0)
        y_f = kv_f * kf_f[None, :, :, :]
        y = (lambda x, s, axes=(-2,-1): torch.fft.irfft2(x, s=s, dim=axes).to(torch.bfloat16))(y_f, (1, L), axes=(1, 2))[:, 0, :S, :]
        y = y + kv * ssm_D[None, None, :]
        return q * y

    def _B_ref(x, dft_seq_re, dft_seq_im, dft_hid_re, dft_hid_im):
        a = torch.einsum("bsd,ed->bse", x, dft_hid_re)
        b = torch.einsum("bsd,ed->bse", x, dft_hid_im)
        y = torch.einsum("ts,bse->bte", dft_seq_re, a) - torch.einsum("ts,bse->bte", dft_seq_im, b)
        return y

    a = _A_ref(A_q, A_k, A_v, A_shift_k, A_ssm_k, A_ssm_D)
    b = _B_ref(B_x, B_dft_seq_re, B_dft_seq_im, B_dft_hid_re, B_dft_hid_im)
    return torch.concatenate([a, b], axis=-1)
```

```python
NAME = "concat_heads__ssm_conv_h3__spectral_fnet__prompt"
L = []
def e(s): L.append("    " + s)
def lab(s): L.append(s + ":")

WS_PART = 8 << 20
PART_SZ = 2048 * 640 * 4

def srd(d, lo, nbytes):
    e(f"s_mov_b32 s{d}, s{lo}"); e(f"s_mov_b32 s{d+1}, s{lo+1}")
    e(f"s_mov_b32 s{d+2}, {nbytes}"); e(f"s_mov_b32 s{d+3}, 0x00020000")

def gemm(tag, BM, BN, KIT, stride, epi):
    TM, TN = BM // 32, BN // 32
    STG = (BM + BN) * 128
    nI = (BM + BN) // 32
    e("v_lshrrev_b32 v1, 6, v0"); e("s_nop 1"); e("v_readfirstlane_b32 s22, v1")
    e("v_and_b32 v2, 63, v0")
    e("v_lshrrev_b32 v3, 3, v2"); e("v_and_b32 v4, 7, v2"); e("v_xor_b32 v4, v4, v3")
    e(f"s_mov_b32 s23, {stride}"); e("v_mul_lo_u32 v5, v3, s23"); e("v_lshl_add_u32 v5, v4, 4, v5")
    for i in range(nI):
        if i < BM // 32:
            e(f"s_add_u32 s{30+i}, s22, {4*i}"); e(f"s_mul_i32 s{30+i}, s{30+i}, {8*stride}"); e(f"s_add_u32 s{30+i}, s{30+i}, s20")
        else:
            e(f"s_add_u32 s{30+i}, s22, {4*(i-BM//32)}"); e(f"s_mul_i32 s{30+i}, s{30+i}, {8*stride}"); e(f"s_add_u32 s{30+i}, s{30+i}, s21")
    e("s_lshl_b32 s24, s22, 10")
    e("v_and_b32 v6, 15, v2"); e("v_lshrrev_b32 v7, 4, v2"); e("v_and_b32 v8, 7, v2"); e("v_xor_b32 v8, v8, v7")
    e("v_lshlrev_b32 v8, 4, v8"); e("v_lshl_add_u32 v8, v6, 7, v8")
    e("s_lshr_b32 s25, s22, 1"); e("s_and_b32 s26, s22, 1")
    e(f"s_mul_i32 s27, s25, {BM//2*128}"); e(f"s_mul_i32 s28, s26, {BN//2*128}"); e(f"s_add_u32 s28, s28, {BM*128}")
    for st in range(3):
        e(f"s_add_u32 s29, s27, {st*STG}"); e(f"v_add_u32 v{10+4*st}, s29, v8"); e(f"v_xor_b32 v{11+4*st}, 64, v{10+4*st}")
        e(f"s_add_u32 s29, s28, {st*STG}"); e(f"v_add_u32 v{12+4*st}, s29, v8"); e(f"v_xor_b32 v{13+4*st}, 64, v{12+4*st}")
    ACC = 24; FR = ACC + TM * TN * 4
    for i in range(TM * TN * 4): e(f"v_mov_b32 v{ACC+i}, 0")
    def dma(it):
        st = it % 3
        for i in range(nI):
            e(f"s_add_u32 m0, s24, {st*STG + i*4096}")
            e("s_nop 0")
            e(f"buffer_load_dwordx4 v5, s[{8 if i < BM//32 else 12}:{11 if i < BM//32 else 15}], s{30+i} offen lds")
            e(f"s_add_u32 s{30+i}, s{30+i}, 128")
    dma(0); dma(1)
    for it in range(KIT):
        st = it % 3
        e(f"s_waitcnt vmcnt({nI if it + 1 < KIT else 0})")
        e("s_barrier")
        if it + 2 < KIT: dma(it + 2)
        for ks in range(2):
            fb = FR + ks * (TM + TN) * 4
            for m in range(TM): e(f"ds_read_b128 v[{fb+4*m}:{fb+4*m+3}], v{10+4*st+ks} offset:{m*2048}")
            for n in range(TN): e(f"ds_read_b128 v[{fb+4*(TM+n)}:{fb+4*(TM+n)+3}], v{12+4*st+ks} offset:{n*2048}")
        for ks in range(2):
            fb = FR + ks * (TM + TN) * 4
            e(f"s_waitcnt lgkmcnt({(TM+TN) if ks == 0 else 0})")
            for m in range(TM):
                for n in range(TN):
                    a = ACC + (m * TN + n) * 4
                    e(f"v_mfma_f32_16x16x32_bf16 v[{a}:{a+3}], v[{fb+4*m}:{fb+4*m+3}], v[{fb+4*(TM+n)}:{fb+4*(TM+n)+3}], v[{a}:{a+3}]")
    e("s_nop 7"); e("s_nop 7")
    epi(TM, TN, ACC)

def kernel_head(name):
    L.append(f".globl {name}"); L.append(".p2align 8"); L.append(f".type {name},@function"); lab(name)

def rne(dst, src):
    e(f"v_cvt_pk_bf16_f32 v{dst}, v{src}, v{src}"); e(f"v_lshlrev_b32 v{dst}, 16, v{dst}")

L.append('.amdgcn_target "amdgcn-amd-amdhsa--gfx950"'); L.append(".text")
kernel_head("k1_kernel")
e("s_cmp_ge_u32 s2, 320"); e("s_cbranch_scc1 L_k1_end")
e("s_cmp_ge_u32 s2, 160"); e("s_cbranch_scc1 L_stage1")
HS = 4160; CH = 8 * HS + 5200
e("s_load_dwordx4 s[4:7], s[0:1], 0"); e("s_load_dwordx4 s[40:43], s[0:1], 16"); e("s_load_dwordx4 s[44:47], s[0:1], 32")
e("s_load_dwordx2 s[48:49], s[0:1], 88")
e("s_waitcnt lgkmcnt(0)")
srd(8, 4, 2621440); srd(12, 6, 2621440); srd(16, 40, 2621440); srd(52, 44, 2621440); srd(56, 48, 5242880)
e("s_lshl_b32 s3, s2, 5"); e("s_load_dwordx8 s[60:67], s[42:43], s3") if False else None
e("s_add_u32 s42, s42, s3"); e("s_addc_u32 s43, s43, 0"); e("s_load_dwordx8 s[60:67], s[42:43], 0")
e("s_lshl_b32 s3, s2, 3"); e("s_add_u32 s46, s46, s3"); e("s_addc_u32 s47, s47, 0"); e("s_load_dwordx2 s[68:69], s[46:47], 0")
e("v_lshrrev_b32 v1, 6, v0"); e("s_nop 1"); e("v_readfirstlane_b32 s22, v1"); e("v_and_b32 v2, 63, v0")
e("s_movk_i32 s23, 0x2800"); e("v_mul_lo_u32 v3, v0, s23"); e("v_add_u32 v3, s3, v3")
for i in range(11):
    e(f"v_add_u32 v4, {(i-3)*1280 & 0xffffffff}, v3"); e(f"buffer_load_dwordx2 v[{20+2*i}:{21+2*i}], v4, s[12:15], 0 offen")
for i in range(8):
    e(f"v_add_u32 v4, {i*1280}, v3"); e(f"buffer_load_dwordx2 v[{42+2*i}:{43+2*i}], v4, s[16:19], 0 offen")
for i in range(8):
    e(f"v_add_u32 v4, {i*1280}, v3"); e(f"buffer_load_dwordx2 v[{58+2*i}:{59+2*i}], v4, s[8:11], 0 offen")
e("s_lshl_b32 s24, s2, 2"); e("s_add_u32 s24, s24, s22"); e("s_lshl_b32 s24, s24, 12"); e("s_add_u32 s24, s24, 4016")
e("v_lshlrev_b32 v4, 6, v2"); e("v_sub_u32 v4, s24, v4")
e("v_cmp_eq_u32 vcc, 63, v2"); e("v_bfrev_b32 v6, 1"); e("s_nop 1"); e("v_cndmask_b32 v5, v4, v6, vcc")
e("buffer_load_dwordx4 v[100:103], v5, s[52:55], 0 offen")
for i in range(1, 5): e(f"buffer_load_dwordx4 v[{100+4*i}:{103+4*i}], v4, s[52:55], 0 offen offset:{16*i}")
e("s_waitcnt lgkmcnt(0)")
for c in range(4):
    e(f"s_lshl_b32 s{70+4*c}, s{60+2*c}, 16"); e(f"s_and_b32 s{71+4*c}, s{60+2*c}, 0xffff0000")
    e(f"s_lshl_b32 s{72+4*c}, s{61+2*c}, 16"); e(f"s_and_b32 s{73+4*c}, s{61+2*c}, 0xffff0000")
e("s_lshl_b32 s86, s68, 16"); e("s_and_b32 s87, s68, 0xffff0000"); e("s_lshl_b32 s88, s69, 16"); e("s_and_b32 s89, s69, 0xffff0000")
e("s_waitcnt vmcnt(13)")
def unp(dst, reg, c):
    if c % 2 == 0: e(f"v_lshlrev_b32 v{dst}, 16, v{reg + c//2}")
    else: e(f"v_and_b32 v{dst}, 0xffff0000, v{reg + c//2}")
for c in range(4):
    for i in range(11): unp(80 + i, 20 + 2*i, c)
    for r in range(8):
        e(f"v_mul_f32 v7, s{73+4*c}, v{80+r}"); rne(7, 7)
        for t in range(1, 4):
            e(f"v_mul_f32 v8, s{73+4*c-t}, v{80+r+t}"); rne(8, 8); e("v_add_f32 v7, v7, v8"); rne(7, 7)
        unp(8, 42 + 2*r, c); e("v_mul_f32 v7, v7, v8"); rne(130 + c*8 + r, 7)
e("v_lshrrev_b32 v4, 2, v0"); e("v_mul_u32_u24 v4, 80, v4"); e("v_and_b32 v5, 3, v0"); e("v_lshl_add_u32 v4, v5, 4, v4")
for c in range(4):
    for p in range(4): e(f"v_perm_b32 v{92+p}, v{131+c*8+2*p}, v{130+c*8+2*p}, s90") if False else (e(f"v_lshrrev_b32 v{92+p}, 16, v{130+c*8+2*p}"), e(f"v_or_b32 v{92+p}, v{92+p}, v{131+c*8+2*p}"))
    e(f"ds_write_b128 v4, v[92:95] offset:{(c*CH + 8*HS + 80) & 0xffff}") if c*CH + 8*HS + 80 < 65536 else (e(f"v_add_u32 v5, {c*CH + 8*HS + 80}, v4"), e("ds_write_b128 v5, v[92:95]"))
    e("s_nop 1")
e("s_waitcnt vmcnt(0)")
e(f"s_mul_i32 s25, s22, {CH}")
for i in range(20): e(f"v_alignbit_b32 v{170+i}, v{119-i}, v{119-i}, 16")
e("v_lshlrev_b32 v4, 6, v2"); e("v_add_u32 v4, s25, v4")
for j in range(8):
    for i in range(16):
        if j % 2 == 0: e(f"v_mov_b32 v{192+i}, v{170+i+j//2}")
        else: e(f"v_alignbit_b32 v{192+i}, v{171+i+j//2}, v{170+i+j//2}, 16")
    for q in range(4): e(f"ds_write_b128 v4, v[{192+4*q}:{195+4*q}] offset:{j*HS+16*q}")
    e("s_nop 1")
for i in range(4): e(f"v_mov_b32 v{192+i}, 0")
e("v_lshrrev_b32 v5, 2, v2"); e(f"v_mul_u32_u24 v5, {HS}, v5"); e("v_and_b32 v6, 3, v2"); e("v_lshl_add_u32 v5, v6, 4, v5"); e("v_add_u32 v5, 4096, v5")
e("v_subrev_u32 v6, 32, v2"); e("v_lshlrev_b32 v6, 4, v6"); e(f"v_add_u32 v6, {8*HS}, v6")
e("v_cmp_gt_u32 vcc, 32, v2"); e("s_nop 1"); e("v_cndmask_b32 v5, v6, v5, vcc"); e("v_add_u32 v5, s25, v5")
e("v_cmp_gt_u32 vcc, 37, v2"); e("s_and_saveexec_b64 s[92:93], vcc"); e("ds_write_b128 v5, v[192:195]"); e("s_mov_b64 exec, s[92:93]")
e("s_waitcnt lgkmcnt(0)"); e("s_barrier")
e("v_and_b32 v4, 31, v2"); e("v_lshrrev_b32 v5, 5, v2"); e("v_and_b32 v6, 7, v4"); e("v_sub_u32 v6, 7, v6")
e(f"v_mul_u32_u24 v7, {HS}, v6"); e("v_lshrrev_b32 v8, 3, v4"); e("v_lshlrev_b32 v8, 4, v8"); e("v_sub_u32 v7, v7, v8")
e("v_lshl_add_u32 v7, v5, 4, v7"); e(f"v_add_u32 v7, {2*2040 - 64*63}, v7"); e("v_add_u32 v7, s25, v7")
e(f"s_add_u32 s26, s25, {8*HS}")
e("v_lshlrev_b32 v9, 4, v5"); e("v_add_u32 v9, s26, v9")
e("v_mul_u32_u24 v10, 80, v4"); e("v_add_u32 v10, v10, v9"); e("v_add_u32 v10, 80, v10"); e("v_add_u32 v11, 2560, v10")
for i in range(32): e(f"v_mov_b32 v{208+i}, 0")
for d in range(64):
    e(f"ds_read_b128 v[170:173], v7 offset:{64*(63-d)}"); e(f"ds_read_b128 v[174:177], v7 offset:{64*(63-d)+32}")
    e(f"v_add_u32 v12, {(-80*d) & 0xffffffff}, v11"); e("v_max_i32 v12, v12, v9")
    e("ds_read_b128 v[178:181], v12"); e("ds_read_b128 v[182:185], v12 offset:32")
    if d < 32:
        e(f"v_add_u32 v13, {(-80*d) & 0xffffffff}, v10"); e("v_max_i32 v13, v13, v9")
        e("ds_read_b128 v[186:189], v13"); e("ds_read_b128 v[190:193], v13 offset:32")
    e("s_waitcnt lgkmcnt(0)")
    e("v_mfma_f32_32x32x16_bf16 v[224:239], v[170:173], v[178:181], v[224:239]")
    if d < 32: e("v_mfma_f32_32x32x16_bf16 v[208:223], v[170:173], v[186:189], v[208:223]")
    e("v_mfma_f32_32x32x16_bf16 v[224:239], v[174:177], v[182:185], v[224:239]")
    if d < 32: e("v_mfma_f32_32x32x16_bf16 v[208:223], v[174:177], v[190:193], v[208:223]")
e("s_nop 15")
e("v_lshlrev_b32 v12, 6, v4"); e("v_lshl_add_u32 v12, v5, 3, v12"); e("v_add_u32 v12, s25, v12")
for t in range(2):
    for g in range(4):
        a = 208 + 16*t + 4*g
        e(f"v_cvt_pk_bf16_f32 v14, v{a}, v{a+1}"); e(f"v_cvt_pk_bf16_f32 v15, v{a+2}, v{a+3}")
        e(f"ds_write_b64 v12, v[14:15] offset:{2048*t + 16*g}"); e("s_nop 1")
e("s_waitcnt lgkmcnt(0)"); e("s_barrier")
e("v_lshlrev_b32 v12, 4, v0")
for c in range(4):
    e(f"v_add_u32 v13, {c*CH}, v12"); e(f"ds_read_b128 v[{170+4*c}:{173+4*c}], v13")
e("s_waitcnt lgkmcnt(0)")
e("s_movk_i32 s23, 0x5000"); e("v_mul_lo_u32 v3, v0, s23"); e("v_add_u32 v3, s3, v3")
for r in range(8):
    for c in range(4):
        unp(7, 170 + 4*c, r) if False else (e(f"v_lshlrev_b32 v7, 16, v{170+4*c+r//2}") if r % 2 == 0 else e(f"v_and_b32 v7, 0xffff0000, v{170+4*c+r//2}"))
        e(f"v_mul_f32 v8, s{86+c}, v{130+c*8+r}"); rne(8, 8); e("v_add_f32 v7, v7, v8"); rne(7, 7)
        unp(8, 58 + 2*r, c); e(f"v_mul_f32 v{16+c}, v7, v8")
    e("v_cvt_pk_bf16_f32 v14, v16, v17"); e("v_cvt_pk_bf16_f32 v15, v18, v19")
    e(f"v_add_u32 v4, {r*2560}, v3"); e("buffer_store_dwordx2 v[14:15], v4, s[56:59], 0 offen"); e("s_nop 1")
e("s_endpgm")
lab("L_stage1")
e("s_load_dwordx2 s[4:5], s[0:1], 48"); e("s_load_dwordx4 s[44:47], s[0:1], 72"); e("s_load_dwordx2 s[48:49], s[0:1], 104")
e("s_sub_u32 s3, s2, 160"); e("s_and_b32 s50, s3, 15"); e("s_lshr_b32 s51, s3, 4")
e("s_waitcnt lgkmcnt(0)")
e("s_cmp_ge_u32 s51, 5"); e("s_cselect_b32 s44, s46, s44"); e("s_cselect_b32 s45, s47, s45")
e("s_cselect_b32 s52, 5, 0"); e("s_sub_u32 s52, s51, s52")
srd(8, 4, 2621440); srd(12, 44, 819200); srd(16, 48, 5242880)
e(f"s_mul_i32 s20, s50, {128*1280}"); e(f"s_mul_i32 s21, s52, {128*1280}")
def epi1(TM, TN, ACC):
    e("v_lshlrev_b32 v6, 12, v6"); e("v_lshl_add_u32 v6, v7, 3, v6")
    e("s_lshl_b32 s27, s51, 19"); e("s_lshl_b32 s28, s26, 18"); e("s_add_u32 s27, s27, s28")
    e("s_lshl_b32 s28, s50, 8"); e("s_add_u32 s27, s27, s28"); e("s_lshl_b32 s28, s25, 7"); e("s_add_u32 s27, s27, s28")
    e("v_add_u32 v6, s27, v6")
    for n in range(TN):
        e(f"v_add_u32 v4, {n*65536}, v6")
        for m in range(TM):
            a = ACC + (m*TN+n)*4
            e(f"v_cvt_pk_bf16_f32 v2, v{a}, v{a+1}"); e(f"v_cvt_pk_bf16_f32 v3, v{a+2}, v{a+3}")
            e(f"buffer_store_dwordx2 v[2:3], v4, s[16:19], 0 offen offset:{m*32}"); e("s_nop 1")
gemm("s1", 128, 128, 10, 1280, epi1)
lab("L_k1_end"); e("s_endpgm")

kernel_head("k2_kernel")
e("s_cmp_ge_u32 s2, 256"); e("s_cbranch_scc1 L_k2_end")
e("s_load_dwordx4 s[44:47], s[0:1], 56"); e("s_load_dwordx2 s[48:49], s[0:1], 104")
e("s_and_b32 s3, s2, 7"); e("s_lshr_b32 s50, s2, 3"); e("s_lshr_b32 s51, s3, 1")
e("s_and_b32 s3, s3, 1"); e("s_lshl_b32 s3, s3, 3"); e("s_lshr_b32 s52, s50, 2"); e("s_add_u32 s52, s52, s3")
e("s_and_b32 s53, s50, 3")
e("s_waitcnt lgkmcnt(0)")
e("s_cmp_ge_u32 s51, 2"); e("s_cselect_b32 s44, s46, s44"); e("s_cselect_b32 s45, s47, s45"); e(f"s_cselect_b32 s54, {640*4096}, 0")
srd(8, 48, 5242880); srd(12, 44, 8388608)
e(f"s_add_u32 s16, s48, {WS_PART}"); e("s_addc_u32 s17, s49, 0"); e(f"s_mov_b32 s18, {4*PART_SZ}"); e("s_mov_b32 s19, 0x00020000")
e("s_and_b32 s55, s51, 1"); e("s_lshl_b32 s55, s55, 11")
e(f"s_mul_i32 s20, s53, {160*4096}"); e("s_add_u32 s20, s20, s54"); e("s_add_u32 s20, s20, s55")
e(f"s_mul_i32 s21, s52, {128*4096}"); e("s_add_u32 s21, s21, s55")
def epi2(TM, TN, ACC):
    e("v_mul_u32_u24 v6, 2560, v6"); e("v_lshl_add_u32 v6, v7, 4, v6")
    e(f"s_mul_i32 s27, s51, {PART_SZ}"); e(f"s_mul_i32 s28, s52, {128*2560}"); e("s_add_u32 s27, s27, s28")
    e(f"s_mul_i32 s28, s26, {64*2560}"); e("s_add_u32 s27, s27, s28")
    e("s_mul_i32 s28, s53, 640"); e("s_add_u32 s27, s27, s28"); e("s_mul_i32 s28, s25, 320"); e("s_add_u32 s27, s27, s28")
    e("v_add_u32 v6, s27, v6")
    for n in range(TN):
        e(f"v_add_u32 v4, {n*16*2560}, v6")
        for m in range(TM):
            a = ACC + (m*TN+n)*4
            e(f"buffer_store_dwordx4 v[{a}:{a+3}], v4, s[16:19], 0 offen offset:{m*64}")
gemm("s2", 160, 128, 16, 4096, epi2)
lab("L_k2_end"); e("s_endpgm")

kernel_head("k3_kernel")
e("s_cmp_ge_u32 s2, 640"); e("s_cbranch_scc1 L_k3_end")
e("s_load_dwordx2 s[4:5], s[0:1], 88"); e("s_load_dwordx2 s[48:49], s[0:1], 104")
e("s_lshl_b32 s3, s2, 8"); e("v_add_u32 v1, s3, v0")
e("s_waitcnt lgkmcnt(0)")
e(f"s_add_u32 s16, s48, {WS_PART}"); e("s_addc_u32 s17, s49, 0"); e(f"s_mov_b32 s18, {4*PART_SZ}"); e("s_mov_b32 s19, 0x00020000")
srd(8, 4, 5242880)
e("v_lshlrev_b32 v2, 5, v1")
for k in range(4):
    e(f"v_add_u32 v3, {k*PART_SZ}, v2")
    e(f"buffer_load_dwordx4 v[{8+8*k}:{11+8*k}], v3, s[16:19], 0 offen"); e(f"buffer_load_dwordx4 v[{12+8*k}:{15+8*k}], v3, s[16:19], 0 offen offset:16")
e("s_mov_b32 s20, 0x3333334"); e("v_mul_hi_u32 v4, v1, s20")
e("v_mul_u32_u24 v5, 80, v4"); e("v_sub_u32 v5, v1, v5")
e("v_mul_u32_u24 v4, 2560, v4"); e("v_lshl_add_u32 v4, v5, 4, v4"); e("v_add_u32 v4, 1280, v4")
e("s_waitcnt vmcnt(0)")
for i in range(8):
    e(f"v_add_f32 v{8+i}, v{8+i}, v{16+i}"); rne(8+i, 8+i); e(f"v_add_f32 v{24+i}, v{24+i}, v{32+i}"); rne(24+i, 24+i)
    e(f"v_sub_f32 v{8+i}, v{8+i}, v{24+i}")
for i in range(4): e(f"v_cvt_pk_bf16_f32 v{40+i}, v{8+2*i}, v{9+2*i}")
e("buffer_store_dwordx4 v[40:43], v4, s[8:11], 0 offen")
lab("L_k3_end"); e("s_endpgm")
L.append('.section .rodata,"a"')
for k in ("k1_kernel", "k2_kernel", "k3_kernel"):
    L += [".p2align 6", f".amdhsa_kernel {k}", "  .amdhsa_next_free_vgpr 256", "  .amdhsa_next_free_sgpr 102", "  .amdhsa_accum_offset 256",
          "  .amdhsa_group_segment_fixed_size 0", "  .amdhsa_kernarg_size 112", "  .amdhsa_user_sgpr_count 2",
          "  .amdhsa_user_sgpr_kernarg_segment_ptr 1", "  .amdhsa_system_sgpr_workgroup_id_x 1", ".end_amdhsa_kernel"]
ref = open(f"cdna_kernels/{NAME}.s.ref").read().split("\n")
hdr = [l for l in ref if l.startswith(";") and "@launch" not in l]
hdr += [f"; @launch kernel=k1_kernel grid=(320,1,1) block=(256,1,1) lds={4*CH}",
        "; @launch kernel=k2_kernel grid=(256,1,1) block=(256,1,1) lds=110592",
        "; @launch kernel=k3_kernel grid=(640,1,1) block=(256,1,1) lds=0"]
open(f"cdna_kernels/{NAME}.s", "w").write("\n".join(hdr + L) + "\n")
```

```python
NAME = "concat_heads__ssm_conv_h3__spectral_fnet__prompt"
L = []
def e(s): L.append("    " + s)
def lab(s): L.append(s + ":")

WS_PART = 8 << 20
PART_SZ = 2048 * 640 * 4

def srd(d, lo, nbytes):
    e(f"s_mov_b32 s{d}, s{lo}"); e(f"s_mov_b32 s{d+1}, s{lo+1}")
    e(f"s_mov_b32 s{d+2}, {nbytes}"); e(f"s_mov_b32 s{d+3}, 0x00020000")

def gemm(tag, BM, BN, KIT, stride, epi):
    TM, TN = BM // 32, BN // 32
    STG = (BM + BN) * 128
    nI = (BM + BN) // 32
    e("v_lshrrev_b32 v1, 6, v0"); e("s_nop 1"); e("v_readfirstlane_b32 s22, v1")
    e("v_and_b32 v2, 63, v0")
    e("v_lshrrev_b32 v3, 3, v2"); e("v_and_b32 v4, 7, v2"); e("v_xor_b32 v4, v4, v3")
    e(f"s_mov_b32 s23, {stride}"); e("v_mul_lo_u32 v5, v3, s23"); e("v_lshl_add_u32 v5, v4, 4, v5")
    for i in range(nI):
        if i < BM // 32:
            e(f"s_add_u32 s{30+i}, s22, {4*i}"); e(f"s_mul_i32 s{30+i}, s{30+i}, {8*stride}"); e(f"s_add_u32 s{30+i}, s{30+i}, s20")
        else:
            e(f"s_add_u32 s{30+i}, s22, {4*(i-BM//32)}"); e(f"s_mul_i32 s{30+i}, s{30+i}, {8*stride}"); e(f"s_add_u32 s{30+i}, s{30+i}, s21")
    e("s_lshl_b32 s24, s22, 10")
    e("v_and_b32 v6, 15, v2"); e("v_lshrrev_b32 v7, 4, v2"); e("v_and_b32 v8, 7, v2"); e("v_xor_b32 v8, v8, v7")
    e("v_lshlrev_b32 v8, 4, v8"); e("v_lshl_add_u32 v8, v6, 7, v8")
    e("s_lshr_b32 s25, s22, 1"); e("s_and_b32 s26, s22, 1")
    e(f"s_mul_i32 s27, s25, {BM//2*128}"); e(f"s_mul_i32 s28, s26, {BN//2*128}"); e(f"s_add_u32 s28, s28, {BM*128}")
    for st in range(3):
        e(f"s_add_u32 s29, s27, {st*STG}"); e(f"v_add_u32 v{10+4*st}, s29, v8"); e(f"v_xor_b32 v{11+4*st}, 64, v{10+4*st}")
        e(f"s_add_u32 s29, s28, {st*STG}"); e(f"v_add_u32 v{12+4*st}, s29, v8"); e(f"v_xor_b32 v{13+4*st}, 64, v{12+4*st}")
    ACC = 24; FR = ACC + TM * TN * 4
    for i in range(TM * TN * 4): e(f"v_mov_b32 v{ACC+i}, 0")
    def dma(it):
        st = it % 3
        for i in range(nI):
            e(f"s_add_u32 m0, s24, {st*STG + i*4096}")
            e("s_nop 0")
            e(f"buffer_load_dwordx4 v5, s[{8 if i < BM//32 else 12}:{11 if i < BM//32 else 15}], s{30+i} offen lds")
            e(f"s_add_u32 s{30+i}, s{30+i}, 128")
    dma(0); dma(1)
    for it in range(KIT):
        st = it % 3
        e(f"s_waitcnt vmcnt({nI if it + 1 < KIT else 0})")
        e("s_barrier")
        if it + 2 < KIT: dma(it + 2)
        for ks in range(2):
            fb = FR + ks * (TM + TN) * 4
            for m in range(TM): e(f"ds_read_b128 v[{fb+4*m}:{fb+4*m+3}], v{10+4*st+ks} offset:{m*2048}")
            for n in range(TN): e(f"ds_read_b128 v[{fb+4*(TM+n)}:{fb+4*(TM+n)+3}], v{12+4*st+ks} offset:{n*2048}")
        for ks in range(2):
            fb = FR + ks * (TM + TN) * 4
            e(f"s_waitcnt lgkmcnt({(TM+TN) if ks == 0 else 0})")
            for m in range(TM):
                for n in range(TN):
                    a = ACC + (m * TN + n) * 4
                    e(f"v_mfma_f32_16x16x32_bf16 v[{a}:{a+3}], v[{fb+4*m}:{fb+4*m+3}], v[{fb+4*(TM+n)}:{fb+4*(TM+n)+3}], v[{a}:{a+3}]")
    e("s_nop 7"); e("s_nop 7")
    epi(TM, TN, ACC)

def kernel_head(name):
    L.append(f".globl {name}"); L.append(".p2align 8"); L.append(f".type {name},@function"); lab(name)

def rne(dst, src):
    e(f"v_cvt_pk_bf16_f32 v{dst}, v{src}, v{src}"); e(f"v_lshlrev_b32 v{dst}, 16, v{dst}")

L.append('.amdgcn_target "amdgcn-amd-amdhsa--gfx950"'); L.append(".text")
kernel_head("k1_kernel")
e("s_cmp_ge_u32 s2, 320"); e("s_cbranch_scc1 L_k1_end")
e("s_cmp_ge_u32 s2, 160"); e("s_cbranch_scc1 L_stage1")
e("s_and_b32 s3, s2, 7"); e("s_mul_i32 s3, s3, 20"); e("s_lshr_b32 s2, s2, 3"); e("s_add_u32 s2, s2, s3")
HS = 4160; CH = 8 * HS + 5200
e("s_load_dwordx4 s[4:7], s[0:1], 0"); e("s_load_dwordx4 s[40:43], s[0:1], 16"); e("s_load_dwordx4 s[44:47], s[0:1], 32")
e("s_load_dwordx2 s[48:49], s[0:1], 88")
e("s_waitcnt lgkmcnt(0)")
srd(8, 4, 2621440); srd(12, 6, 2621440); srd(16, 40, 2621440); srd(52, 44, 2621440); srd(56, 48, 5242880)
e("s_lshl_b32 s3, s2, 5"); e("s_load_dwordx8 s[60:67], s[42:43], s3") if False else None
e("s_add_u32 s42, s42, s3"); e("s_addc_u32 s43, s43, 0"); e("s_load_dwordx8 s[60:67], s[42:43], 0")
e("s_lshl_b32 s3, s2, 3"); e("s_add_u32 s46, s46, s3"); e("s_addc_u32 s47, s47, 0"); e("s_load_dwordx2 s[68:69], s[46:47], 0")
e("v_lshrrev_b32 v1, 6, v0"); e("s_nop 1"); e("v_readfirstlane_b32 s22, v1"); e("v_and_b32 v2, 63, v0")
e("s_movk_i32 s23, 0x2800"); e("v_mul_lo_u32 v3, v0, s23"); e("v_add_u32 v3, s3, v3")
for i in range(11):
    e(f"v_add_u32 v4, {(i-3)*1280 & 0xffffffff}, v3"); e(f"buffer_load_dwordx2 v[{20+2*i}:{21+2*i}], v4, s[12:15], 0 offen")
for i in range(8):
    e(f"v_add_u32 v4, {i*1280}, v3"); e(f"buffer_load_dwordx2 v[{42+2*i}:{43+2*i}], v4, s[16:19], 0 offen")
for i in range(8):
    e(f"v_add_u32 v4, {i*1280}, v3"); e(f"buffer_load_dwordx2 v[{58+2*i}:{59+2*i}], v4, s[8:11], 0 offen")
e("s_lshl_b32 s24, s2, 2"); e("s_add_u32 s24, s24, s22"); e("s_lshl_b32 s24, s24, 12"); e("s_add_u32 s24, s24, 4016")
e("v_lshlrev_b32 v4, 6, v2"); e("v_sub_u32 v4, s24, v4")
e("v_cmp_eq_u32 vcc, 63, v2"); e("v_bfrev_b32 v6, 1"); e("s_nop 1"); e("v_cndmask_b32 v5, v4, v6, vcc")
e("buffer_load_dwordx4 v[100:103], v5, s[52:55], 0 offen")
for i in range(1, 5): e(f"buffer_load_dwordx4 v[{100+4*i}:{103+4*i}], v4, s[52:55], 0 offen offset:{16*i}")
e("s_waitcnt lgkmcnt(0)")
for c in range(4):
    e(f"s_lshl_b32 s{70+4*c}, s{60+2*c}, 16"); e(f"s_and_b32 s{71+4*c}, s{60+2*c}, 0xffff0000")
    e(f"s_lshl_b32 s{72+4*c}, s{61+2*c}, 16"); e(f"s_and_b32 s{73+4*c}, s{61+2*c}, 0xffff0000")
e("s_lshl_b32 s86, s68, 16"); e("s_and_b32 s87, s68, 0xffff0000"); e("s_lshl_b32 s88, s69, 16"); e("s_and_b32 s89, s69, 0xffff0000")
e("s_waitcnt vmcnt(13)")
def unp(dst, reg, c):
    if c % 2 == 0: e(f"v_lshlrev_b32 v{dst}, 16, v{reg + c//2}")
    else: e(f"v_and_b32 v{dst}, 0xffff0000, v{reg + c//2}")
for c in range(4):
    for i in range(11): unp(80 + i, 20 + 2*i, c)
    for r in range(8):
        e(f"v_mul_f32 v7, s{73+4*c}, v{80+r}"); rne(7, 7)
        for t in range(1, 4):
            e(f"v_mul_f32 v8, s{73+4*c-t}, v{80+r+t}"); rne(8, 8); e("v_add_f32 v7, v7, v8"); rne(7, 7)
        unp(8, 42 + 2*r, c); e("v_mul_f32 v7, v7, v8"); rne(130 + c*8 + r, 7)
e("v_lshrrev_b32 v4, 2, v0"); e("v_mul_u32_u24 v4, 80, v4"); e("v_and_b32 v5, 3, v0"); e("v_lshl_add_u32 v4, v5, 4, v4")
for c in range(4):
    for p in range(4): e(f"v_perm_b32 v{92+p}, v{131+c*8+2*p}, v{130+c*8+2*p}, s90") if False else (e(f"v_lshrrev_b32 v{92+p}, 16, v{130+c*8+2*p}"), e(f"v_or_b32 v{92+p}, v{92+p}, v{131+c*8+2*p}"))
    e(f"ds_write_b128 v4, v[92:95] offset:{(c*CH + 8*HS + 80) & 0xffff}") if c*CH + 8*HS + 80 < 65536 else (e(f"v_add_u32 v5, {c*CH + 8*HS + 80}, v4"), e("ds_write_b128 v5, v[92:95]"))
    e("s_nop 1")
e("s_waitcnt vmcnt(0)")
e(f"s_mul_i32 s25, s22, {CH}")
for i in range(20): e(f"v_alignbit_b32 v{170+i}, v{119-i}, v{119-i}, 16")
e("v_lshlrev_b32 v4, 6, v2"); e("v_add_u32 v4, s25, v4")
for j in range(8):
    for i in range(16):
        if j % 2 == 0: e(f"v_mov_b32 v{192+i}, v{170+i+j//2}")
        else: e(f"v_alignbit_b32 v{192+i}, v{171+i+j//2}, v{170+i+j//2}, 16")
    for q in range(4): e(f"ds_write_b128 v4, v[{192+4*q}:{195+4*q}] offset:{j*HS+16*q}")
    e("s_nop 1")
for i in range(4): e(f"v_mov_b32 v{192+i}, 0")
e("v_lshrrev_b32 v5, 2, v2"); e(f"v_mul_u32_u24 v5, {HS}, v5"); e("v_and_b32 v6, 3, v2"); e("v_lshl_add_u32 v5, v6, 4, v5"); e("v_add_u32 v5, 4096, v5")
e("v_subrev_u32 v6, 32, v2"); e("v_lshlrev_b32 v6, 4, v6"); e(f"v_add_u32 v6, {8*HS}, v6")
e("v_cmp_gt_u32 vcc, 32, v2"); e("s_nop 1"); e("v_cndmask_b32 v5, v6, v5, vcc"); e("v_add_u32 v5, s25, v5")
e("v_cmp_gt_u32 vcc, 37, v2"); e("s_and_saveexec_b64 s[92:93], vcc"); e("ds_write_b128 v5, v[192:195]"); e("s_mov_b64 exec, s[92:93]")
e("s_waitcnt lgkmcnt(0)"); e("s_barrier")
e("v_and_b32 v4, 31, v2"); e("v_lshrrev_b32 v5, 5, v2"); e("v_and_b32 v6, 7, v4"); e("v_sub_u32 v6, 7, v6")
e(f"v_mul_u32_u24 v7, {HS}, v6"); e("v_lshrrev_b32 v8, 3, v4"); e("v_lshlrev_b32 v8, 4, v8"); e("v_sub_u32 v7, v7, v8")
e("v_lshl_add_u32 v7, v5, 4, v7"); e(f"v_add_u32 v7, {2*2040 - 64*63}, v7"); e("v_add_u32 v7, s25, v7")
e(f"s_add_u32 s26, s25, {8*HS}")
e("v_lshlrev_b32 v9, 4, v5"); e("v_add_u32 v9, s26, v9")
e("v_mul_u32_u24 v10, 80, v4"); e("v_add_u32 v10, v10, v9"); e("v_add_u32 v10, 80, v10"); e("v_add_u32 v11, 2560, v10")
for i in range(32): e(f"v_mov_b32 v{208+i}, 0")
def rd(d):
    R = 170 if d % 2 == 0 else 96
    e(f"ds_read_b128 v[{R}:{R+3}], v7 offset:{64*(63-d)}"); e(f"ds_read_b128 v[{R+4}:{R+7}], v7 offset:{64*(63-d)+32}")
    e(f"v_add_u32 v12, {(-80*d) & 0xffffffff}, v11"); e("v_max_i32 v12, v12, v9")
    e(f"ds_read_b128 v[{R+8}:{R+11}], v12"); e(f"ds_read_b128 v[{R+12}:{R+15}], v12 offset:32")
    if d < 32:
        e(f"v_add_u32 v13, {(-80*d) & 0xffffffff}, v10"); e("v_max_i32 v13, v13, v9")
        e(f"ds_read_b128 v[{R+16}:{R+19}], v13"); e(f"ds_read_b128 v[{R+20}:{R+23}], v13 offset:32")
rd(0)
for d in range(64):
    R = 170 if d % 2 == 0 else 96
    if d < 63:
        rd(d + 1); e(f"s_waitcnt lgkmcnt({6 if d + 1 < 32 else 4})")
    else: e("s_waitcnt lgkmcnt(0)")
    e(f"v_mfma_f32_32x32x16_bf16 v[224:239], v[{R}:{R+3}], v[{R+8}:{R+11}], v[224:239]")
    if d < 32: e(f"v_mfma_f32_32x32x16_bf16 v[208:223], v[{R}:{R+3}], v[{R+16}:{R+19}], v[208:223]")
    e(f"v_mfma_f32_32x32x16_bf16 v[224:239], v[{R+4}:{R+7}], v[{R+12}:{R+15}], v[224:239]")
    if d < 32: e(f"v_mfma_f32_32x32x16_bf16 v[208:223], v[{R+4}:{R+7}], v[{R+20}:{R+23}], v[208:223]")
e("s_nop 15")
e("v_lshlrev_b32 v12, 6, v4"); e("v_lshl_add_u32 v12, v5, 3, v12"); e("v_add_u32 v12, s25, v12")
for t in range(2):
    for g in range(4):
        a = 208 + 16*t + 4*g
        e(f"v_cvt_pk_bf16_f32 v14, v{a}, v{a+1}"); e(f"v_cvt_pk_bf16_f32 v15, v{a+2}, v{a+3}")
        e(f"ds_write_b64 v12, v[14:15] offset:{2048*t + 16*g}"); e("s_nop 1")
e("s_waitcnt lgkmcnt(0)"); e("s_barrier")
e("v_lshlrev_b32 v12, 4, v0")
for c in range(4):
    e(f"v_add_u32 v13, {c*CH}, v12"); e(f"ds_read_b128 v[{170+4*c}:{173+4*c}], v13")
e("s_waitcnt lgkmcnt(0)")
e("s_movk_i32 s23, 0x5000"); e("v_mul_lo_u32 v3, v0, s23"); e("v_add_u32 v3, s3, v3")
for r in range(8):
    for c in range(4):
        unp(7, 170 + 4*c, r) if False else (e(f"v_lshlrev_b32 v7, 16, v{170+4*c+r//2}") if r % 2 == 0 else e(f"v_and_b32 v7, 0xffff0000, v{170+4*c+r//2}"))
        e(f"v_mul_f32 v8, s{86+c}, v{130+c*8+r}"); rne(8, 8); e("v_add_f32 v7, v7, v8"); rne(7, 7)
        unp(8, 58 + 2*r, c); e(f"v_mul_f32 v{16+c}, v7, v8")
    e("v_cvt_pk_bf16_f32 v14, v16, v17"); e("v_cvt_pk_bf16_f32 v15, v18, v19")
    e(f"v_add_u32 v4, {r*2560}, v3"); e("buffer_store_dwordx2 v[14:15], v4, s[56:59], 0 offen"); e("s_nop 1")
e("s_endpgm")
lab("L_stage1")
e("s_load_dwordx2 s[4:5], s[0:1], 48"); e("s_load_dwordx4 s[44:47], s[0:1], 72"); e("s_load_dwordx2 s[48:49], s[0:1], 104")
e("s_sub_u32 s3, s2, 160"); e("s_and_b32 s50, s3, 15"); e("s_lshr_b32 s51, s3, 4")
e("s_waitcnt lgkmcnt(0)")
e("s_cmp_ge_u32 s51, 5"); e("s_cselect_b32 s44, s46, s44"); e("s_cselect_b32 s45, s47, s45")
e("s_cselect_b32 s52, 5, 0"); e("s_sub_u32 s52, s51, s52")
srd(8, 4, 2621440); srd(12, 44, 819200); srd(16, 48, 5242880)
e(f"s_mul_i32 s20, s50, {128*1280}"); e(f"s_mul_i32 s21, s52, {128*1280}")
def epi1(TM, TN, ACC):
    e("v_lshlrev_b32 v6, 12, v6"); e("v_lshl_add_u32 v6, v7, 3, v6")
    e("s_lshl_b32 s27, s51, 19"); e("s_lshl_b32 s28, s26, 18"); e("s_add_u32 s27, s27, s28")
    e("s_lshl_b32 s28, s50, 8"); e("s_add_u32 s27, s27, s28"); e("s_lshl_b32 s28, s25, 7"); e("s_add_u32 s27, s27, s28")
    e("v_add_u32 v6, s27, v6")
    for n in range(TN):
        e(f"v_add_u32 v4, {n*65536}, v6")
        for m in range(TM):
            a = ACC + (m*TN+n)*4
            e(f"v_cvt_pk_bf16_f32 v2, v{a}, v{a+1}"); e(f"v_cvt_pk_bf16_f32 v3, v{a+2}, v{a+3}")
            e(f"buffer_store_dwordx2 v[2:3], v4, s[16:19], 0 offen offset:{m*32}"); e("s_nop 1")
gemm("s1", 128, 128, 10, 1280, epi1)
lab("L_k1_end"); e("s_endpgm")

kernel_head("k2_kernel")
e("s_cmp_ge_u32 s2, 256"); e("s_cbranch_scc1 L_k2_end")
e("s_load_dwordx4 s[44:47], s[0:1], 56"); e("s_load_dwordx2 s[48:49], s[0:1], 104")
e("s_and_b32 s3, s2, 7"); e("s_lshr_b32 s50, s2, 3"); e("s_lshr_b32 s51, s3, 1")
e("s_and_b32 s3, s3, 1"); e("s_lshl_b32 s3, s3, 3"); e("s_lshr_b32 s52, s50, 2"); e("s_add_u32 s52, s52, s3")
e("s_and_b32 s53, s50, 3")
e("s_waitcnt lgkmcnt(0)")
e("s_cmp_ge_u32 s51, 2"); e("s_cselect_b32 s44, s46, s44"); e("s_cselect_b32 s45, s47, s45"); e(f"s_cselect_b32 s54, {640*4096}, 0")
srd(8, 48, 5242880); srd(12, 44, 8388608)
e(f"s_add_u32 s16, s48, {WS_PART}"); e("s_addc_u32 s17, s49, 0"); e(f"s_mov_b32 s18, {4*PART_SZ}"); e("s_mov_b32 s19, 0x00020000")
e("s_and_b32 s55, s51, 1"); e("s_lshl_b32 s55, s55, 11")
e(f"s_mul_i32 s20, s53, {160*4096}"); e("s_add_u32 s20, s20, s54"); e("s_add_u32 s20, s20, s55")
e(f"s_mul_i32 s21, s52, {128*4096}"); e("s_add_u32 s21, s21, s55")
def epi2(TM, TN, ACC):
    e("v_mul_u32_u24 v6, 2560, v6"); e("v_lshl_add_u32 v6, v7, 4, v6")
    e(f"s_mul_i32 s27, s51, {PART_SZ}"); e(f"s_mul_i32 s28, s52, {128*2560}"); e("s_add_u32 s27, s27, s28")
    e(f"s_mul_i32 s28, s26, {64*2560}"); e("s_add_u32 s27, s27, s28")
    e("s_mul_i32 s28, s53, 640"); e("s_add_u32 s27, s27, s28"); e("s_mul_i32 s28, s25, 320"); e("s_add_u32 s27, s27, s28")
    e("v_add_u32 v6, s27, v6")
    for n in range(TN):
        e(f"v_add_u32 v4, {n*16*2560}, v6")
        for m in range(TM):
            a = ACC + (m*TN+n)*4
            e(f"buffer_store_dwordx4 v[{a}:{a+3}], v4, s[16:19], 0 offen offset:{m*64}")
gemm("s2", 160, 128, 16, 4096, epi2)
lab("L_k2_end"); e("s_endpgm")

kernel_head("k3_kernel")
e("s_cmp_ge_u32 s2, 640"); e("s_cbranch_scc1 L_k3_end")
e("s_load_dwordx2 s[4:5], s[0:1], 88"); e("s_load_dwordx2 s[48:49], s[0:1], 104")
e("s_lshl_b32 s3, s2, 8"); e("v_add_u32 v1, s3, v0")
e("s_waitcnt lgkmcnt(0)")
e(f"s_add_u32 s16, s48, {WS_PART}"); e("s_addc_u32 s17, s49, 0"); e(f"s_mov_b32 s18, {4*PART_SZ}"); e("s_mov_b32 s19, 0x00020000")
srd(8, 4, 5242880)
e("v_lshlrev_b32 v2, 5, v1")
for k in range(4):
    e(f"v_add_u32 v3, {k*PART_SZ}, v2")
    e(f"buffer_load_dwordx4 v[{8+8*k}:{11+8*k}], v3, s[16:19], 0 offen"); e(f"buffer_load_dwordx4 v[{12+8*k}:{15+8*k}], v3, s[16:19], 0 offen offset:16")
e("s_mov_b32 s20, 0x3333334"); e("v_mul_hi_u32 v4, v1, s20")
e("v_mul_u32_u24 v5, 80, v4"); e("v_sub_u32 v5, v1, v5")
e("v_mul_u32_u24 v4, 2560, v4"); e("v_lshl_add_u32 v4, v5, 4, v4"); e("v_add_u32 v4, 1280, v4")
e("s_waitcnt vmcnt(0)")
for i in range(8):
    e(f"v_add_f32 v{8+i}, v{8+i}, v{16+i}"); rne(8+i, 8+i); e(f"v_add_f32 v{24+i}, v{24+i}, v{32+i}"); rne(24+i, 24+i)
    e(f"v_sub_f32 v{8+i}, v{8+i}, v{24+i}")
for i in range(4): e(f"v_cvt_pk_bf16_f32 v{40+i}, v{8+2*i}, v{9+2*i}")
e("buffer_store_dwordx4 v[40:43], v4, s[8:11], 0 offen")
lab("L_k3_end"); e("s_endpgm")
L.append('.section .rodata,"a"')
for k in ("k1_kernel", "k2_kernel", "k3_kernel"):
    L += [".p2align 6", f".amdhsa_kernel {k}", "  .amdhsa_next_free_vgpr 256", "  .amdhsa_next_free_sgpr 102", "  .amdhsa_accum_offset 256",
          "  .amdhsa_group_segment_fixed_size 0", "  .amdhsa_kernarg_size 112", "  .amdhsa_user_sgpr_count 2",
          "  .amdhsa_user_sgpr_kernarg_segment_ptr 1", "  .amdhsa_system_sgpr_workgroup_id_x 1", ".end_amdhsa_kernel"]
ref = open(f"cdna_kernels/{NAME}.s.ref").read().split("\n")
hdr = [l for l in ref if l.startswith(";") and "@launch" not in l]
hdr += [f"; @launch kernel=k1_kernel grid=(320,1,1) block=(256,1,1) lds={4*CH}",
        "; @launch kernel=k2_kernel grid=(256,1,1) block=(256,1,1) lds=110592",
        "; @launch kernel=k3_kernel grid=(640,1,1) block=(256,1,1) lds=0"]
open(f"cdna_kernels/{NAME}.s", "w").write("\n".join(hdr + L) + "\n")
```
